```python
import torch

def _softmax(x, axis=-1):
    return torch.softmax(x, dim=axis)

def _gelu(x):
    return torch.nn.functional.gelu(x, approximate='tanh')

def _silu(x):
    return torch.nn.functional.silu(x)

def _sigmoid(x):
    return torch.sigmoid(x)

def _layernorm(x, axis=-1, eps=1e-05):
    m = x.mean(dim=axis, keepdim=True)
    v = x.var(dim=axis, keepdim=True, unbiased=False)
    return (x - m) / torch.sqrt(v + eps)

def _scatter_add(tgt, idx, src, axis=0):
    return tgt.clone().index_add_(axis, idx, src)

def _segment_sum(src, seg, n):
    out = torch.zeros((n,) + src.shape[1:], dtype=src.dtype)
    return out.index_add_(0, seg, src)

def _pad(x, pw):
    flat = tuple((v for pair in reversed(pw) for v in pair))
    return torch.nn.functional.pad(x, flat)
kernel_name = 'adaLN_cond__sliding_block_cached__glu_gated_bilinear__decode'

def setup_inputs():

    _w = lambda a: (lambda t: t.to(torch.bfloat16) if t.is_floating_point() else t)(torch.as_tensor(a))

    def _A_setup():
        B, Sq, D = (1, 1, 640)
        Hq, Hkv, Sk, Dh = (32, 32, 32768, 192)
        assert Hq % Hkv == 0, (Hq, Hkv)
        return {'x': _w((lambda *s: torch.randn(*s, dtype=torch.bfloat16) * 0.05)(B, Sq, D)), 'k_cache': _w((lambda *s: torch.randn(*s, dtype=torch.bfloat16) * 3.2)(B, Hkv, Sk, Dh)), 'v_cache': _w((lambda *s: torch.randn(*s, dtype=torch.bfloat16) * 3.2)(B, Hkv, Sk, Dh)), 'wq': _w((lambda *s: torch.randn(*s, dtype=torch.bfloat16) * 3.2)(D, Hq * Dh) * D ** (-0.5)), 'wo': _w((lambda *s: torch.randn(*s, dtype=torch.bfloat16) * 3.2)(Hq * Dh, D) * (Hq * Dh) ** (-0.5))}
    _A_in = _A_setup()

    def _B_setup():
        B, S, D, F = (1, 1, 640, 1536)
        return {'x': _w((lambda *s: torch.randn(*s, dtype=torch.bfloat16) * 0.05)(B, S, D)), 'w_gate': _w((lambda *s: torch.randn(*s, dtype=torch.bfloat16) * 3.2)(D, F) * D ** (-0.5)), 'w_up': _w((lambda *s: torch.randn(*s, dtype=torch.bfloat16) * 3.2)(D, F) * D ** (-0.5)), 'w_down': _w((lambda *s: torch.randn(*s, dtype=torch.bfloat16) * 3.2)(F, D) * F ** (-0.5))}
    _B_in = _B_setup()
    return {'A_x': _A_in['x'], 'A_k_cache': _A_in['k_cache'], 'A_v_cache': _A_in['v_cache'], 'A_wq': _A_in['wq'], 'A_wo': _A_in['wo'], 'B_x': _B_in['x'], 'B_w_gate': _B_in['w_gate'], 'B_w_up': _B_in['w_up'], 'B_w_down': _B_in['w_down'], 'c': _w((lambda *s: torch.randn(*s, dtype=torch.bfloat16) * 0.2)(1, 640) * 8.0), 'w_mod': _w((lambda *s: torch.randn(*s, dtype=torch.bfloat16) * 0.2)(640, 6 * 640) * 640 ** (-0.5) * 8.0)}

def reference(A_x, A_k_cache, A_v_cache, A_wq, A_wo, B_x, B_w_gate, B_w_up, B_w_down, c, w_mod):

    def _A_ref(x, k_cache, v_cache, wq, wo):
        B, Sq, D = x.shape
        Hq, Dh = (32, 192)
        Hkv, Sk = (k_cache.shape[1], k_cache.shape[2])
        W = min(4096, max(256, Sk // 4))
        rep = Hq // Hkv
        q = (lambda x, *d: x.permute(*d))((x @ wq).reshape(B, Sq, Hq, Dh), 0, 2, 1, 3)
        k = (lambda x, n, axis: torch.repeat_interleave(x, n, dim=axis))(k_cache[:, :, Sk - W:, :], rep, axis=1)
        v = (lambda x, n, axis: torch.repeat_interleave(x, n, dim=axis))(v_cache[:, :, Sk - W:, :], rep, axis=1)
        scores = torch.einsum('bhqd,bhkd->bhqk', q, k) * Dh ** (-0.5)
        p = _softmax(scores, axis=-1)
        o = torch.einsum('bhqk,bhkd->bhqd', p, v)
        return (lambda x, *d: x.permute(*d))(o, 0, 2, 1, 3).reshape(B, Sq, Hq * Dh) @ wo

    def _B_ref(x, w_gate, w_up, w_down):
        g = torch.einsum('bsd,df->bsf', x, w_gate)
        u = torch.einsum('bsd,df->bsf', x, w_up)
        h = g * u
        return torch.einsum('bsf,fd->bsd', h, w_down)
    x = A_x
    mod = (_silu(c) @ w_mod).reshape(c.shape[0], 6, 1, -1)
    sa, ca, ga, sb, cb, gb = (mod[:, 0].clone(), mod[:, 1].clone(), mod[:, 2].clone(), mod[:, 3].clone(), mod[:, 4].clone(), mod[:, 5].clone())
    h = _layernorm(x, axis=-1) * (1 + ca) + sa
    x = x + ga * _A_ref(h, A_k_cache, A_v_cache, A_wq, A_wo)
    h = _layernorm(x, axis=-1) * (1 + cb) + sb
    x = x + gb * _B_ref(h, B_w_gate, B_w_up, B_w_down)
    return x
```

```python
import re

TRANS = ("v_exp_f32", "v_log_f32", "v_rcp_f32", "v_rsq_f32", "v_sqrt_f32", "v_sin_f32", "v_cos_f32")

def regs_of(op):
    op = op.strip()
    m = re.fullmatch(r"([vs])(\d+)", op)
    if m: return {(m.group(1), int(m.group(2)))}
    m = re.fullmatch(r"([vs])\[(\d+):(\d+)\]", op)
    if m: return {(m.group(1), i) for i in range(int(m.group(2)), int(m.group(3)) + 1)}
    if op == "vcc": return {("s", 106), ("s", 107)}
    if op == "vcc_lo": return {("s", 106)}
    if op == "exec": return {("s", 126), ("s", 127)}
    if op == "exec_lo": return {("s", 126)}
    if op == "exec_hi": return {("s", 127)}
    if op == "m0": return {("s", 124)}
    m = re.fullmatch(r"-?abs\((.*)\)|-(.*)|\|(.*)\|", op)
    if m:
        inner = next(g for g in m.groups() if g)
        return regs_of(inner)
    return set()

class Ins:
    __slots__ = ("text", "mn", "kind", "wr", "rd", "dpp", "trans", "passes", "srcc", "lds_dma", "wide_store", "lanesel", "ws", "srcab")
    def __init__(self, text):
        self.text = text
        t = text.split(";")[0].strip()
        parts = t.split(None, 1)
        self.mn = mn = parts[0]
        rest = parts[1] if len(parts) > 1 else ""
        ops = [o.strip() for o in re.split(r",(?![^\[]*\])", rest)] if rest else []
        mods = ""
        if ops:
            last = ops[-1].split(None, 1)
            ops[-1] = last[0]
            mods = last[1] if len(last) > 1 else ""
        self.dpp = ("_dpp" in mn) or any(k in mods for k in ("quad_perm", "row_shr", "row_shl", "row_ror", "row_mirror", "row_half_mirror", "row_bcast", "row_newbcast"))
        self.trans = any(mn.startswith(x) for x in TRANS)
        self.passes = 0; self.srcc = set(); self.lds_dma = False; self.wide_store = False; self.lanesel = set()
        self.ws = 1
        R = [regs_of(o) for o in ops]
        allr = set().union(*R) if R else set()
        self.srcab = set().union(*R[1:3]) if len(R) > 1 else set()
        if mn == "s_nop":
            self.kind = "nop"; self.ws = int(ops[0]) + 1; self.wr = set(); self.rd = set()
        elif mn.startswith("v_mfma"):
            self.kind = "mfma"; self.wr = R[0]; self.rd = R[1] | R[2] | R[3]; self.srcc = R[3]
            self.passes = 8 if "32x32" in mn else 4
        elif mn.startswith("v_cmp"):
            self.kind = "valu"; self.wr = R[0]; self.rd = set().union(*R[1:])
        elif mn.startswith("v_permlane") and "swap" in mn:
            self.kind = "valu"; self.wr = allr; self.rd = allr
        elif mn.startswith("v_readlane"):
            self.kind = "valu"; self.wr = R[0]; self.rd = R[1] | R[2]; self.lanesel = R[2]
        elif mn.startswith("v_writelane"):
            self.kind = "valu"; self.wr = R[0]; self.rd = R[0] | R[1] | R[2]; self.lanesel = R[2]
        elif mn.startswith("v_"):
            self.kind = "valu"; self.wr = R[0]; self.rd = set().union(*R[1:]) if len(R) > 1 else set()
            if mn.startswith(("v_fmac", "v_dot2c", "v_mac")) or self.dpp: self.rd |= R[0]
            if mn.startswith("v_cndmask") and len(R) == 3: self.rd |= regs_of("vcc")
            if mn.startswith(("v_add_co", "v_sub_co", "v_addc_co", "v_subb_co", "v_div_scale")): self.wr |= R[1]
        elif mn.startswith(("buffer_", "global_")):
            self.kind = "vmem"
            if " lds" in (" " + mods) or "load_lds" in mn:
                self.lds_dma = True; self.wr = set(); self.rd = allr | regs_of("m0")
            elif "store" in mn or ("atomic" in mn and "sc0" not in mods):
                self.wr = set(); self.rd = allr
                self.wide_store = ("x3" in mn or "x4" in mn)
            elif "load" in mn or "atomic" in mn:
                self.wr = R[0]; self.rd = set().union(*R[1:])
                if "atomic" in mn: self.rd |= R[0]
            else:
                self.wr = set(); self.rd = allr
        elif mn.startswith("ds_"):
            self.kind = "ds"
            if mn.startswith(("ds_read", "ds_bpermute", "ds_permute", "ds_swizzle")) or "_rtn" in mn:
                self.wr = R[0]; self.rd = set().union(*R[1:])
            else:
                self.wr = set(); self.rd = allr
        elif mn.startswith("s_load") or mn.startswith("s_mem") or mn.startswith("s_buffer_load"):
            self.kind = "smem"; self.wr = R[0] if R else set(); self.rd = set().union(*R[1:]) if len(R) > 1 else set()
        elif mn.startswith("s_"):
            self.kind = "salu"
            if mn.startswith(("s_cmp", "s_cbranch", "s_branch", "s_waitcnt", "s_barrier", "s_endpgm", "s_sleep", "s_setprio", "s_bitcmp", "s_setpc")):
                self.wr = set(); self.rd = allr
            else:
                self.wr = R[0] if R else set(); self.rd = set().union(*R[1:]) if len(R) > 1 else set()
                if "saveexec" in mn: self.wr |= regs_of("exec"); self.rd |= regs_of("exec")
        else:
            raise ValueError("unknown instr: " + text)

def required(prod, cons):
    need = 0
    pv = {r for r in prod.wr if r[0] == "v"}
    ps = {r for r in prod.wr if r[0] == "s"}
    if prod.kind == "valu":
        if pv:
            if cons.mn.startswith(("v_readlane", "v_readfirstlane")) and pv & cons.rd: need = max(need, 1)
            if cons.dpp and pv & cons.rd: need = max(need, 2)
            if cons.mn.startswith("v_permlane") and pv & cons.rd: need = max(need, 2)
            if cons.kind == "mfma" and pv & cons.rd: need = max(need, 2)
            if prod.trans and cons.kind == "valu" and not cons.trans and pv & cons.rd: need = max(need, 1)
            if prod.trans and cons.kind in ("vmem", "ds") and pv & cons.rd: need = max(need, 1)
            if prod.mn.startswith("v_dot") and cons.kind in ("valu", "vmem", "ds", "mfma") and pv & (cons.rd | cons.wr):
                same = (cons.mn == prod.mn) and cons.mn.startswith("v_dot2c") and (pv == cons.wr) and not (pv & cons.srcab)
                if not same: need = max(need, 3)
        if ps:
            if cons.kind == "valu" and ps & cons.rd: need = max(need, 2)
            if cons.kind == "valu" and ps & cons.lanesel: need = max(need, 4)
            if cons.kind == "vmem" and ps & cons.rd: need = max(need, 5)
            if cons.kind in ("salu", "smem") and ps & cons.rd: need = max(need, 2)
    if prod.kind == "mfma":
        base = {4: 8, 8: 12}[prod.passes]
        if cons.kind == "mfma":
            if prod.wr & (cons.rd - cons.srcc): need = max(need, base)
            if prod.wr & cons.srcc:
                if prod.wr == cons.srcc and prod.passes == cons.passes: pass
                else: need = max(need, base - 2)
        else:
            if prod.wr & (cons.rd | cons.wr): need = max(need, base)
            if cons.kind == "valu" and prod.srcc & cons.wr: need = max(need, {4: 3, 8: 7}[prod.passes])
    if prod.kind == "salu" and ("s", 124) in prod.wr and cons.lds_dma: need = max(need, 1)
    if prod.kind == "vmem" and prod.wide_store and cons.kind == "valu" and (prod.rd & cons.wr): need = max(need, 2)
    if prod.kind == "vmem" and prod.wide_store and cons.kind in ("vmem", "ds") and (prod.rd & cons.wr): need = max(need, 1)
    return need

class Asm:
    def __init__(self):
        self.items = []
    def __call__(self, s):
        for line in s.strip("\n").split("\n"):
            line = line.strip()
            if line: self.items.append(line)
    def label(self, n): self.items.append(n + ":")
    def finalize(self):
        out = []; hist = []
        nins = 0
        for line in self.items:
            t = line.split(";")[0].strip()
            if not t or t.endswith(":") or t.startswith("."):
                out.append(line)
                continue
            ins = Ins(line)
            need = 0; dist = 0
            for p in reversed(hist):
                if dist >= 13: break
                r = required(p, ins)
                if r > dist: need = max(need, r - dist)
                dist += p.ws
            while need > 0:
                n = min(need, 16)
                nop = Ins(f"s_nop {n-1}")
                out.append(f"s_nop {n-1}   ; auto"); hist.append(nop); need -= n; nins += 1
            out.append(line); hist.append(ins)
            if len(hist) > 40: hist = hist[-40:]
        self.nauto = nins
        return "\n".join(out) + "\n"
```

```python
import sys
sys.path.insert(0, "dev")
from asmlib import Asm

KNAME = "adaLN_cond__sliding_block_cached__glu_gated_bilinear__decode_kernel"
STAMPS = "--stamps" in sys.argv
OUT = [a for a in sys.argv[1:] if not a.startswith("--")][0]

WS_MODP = 0
WS_QP = 65536
WS_ML = 262144
WS_OP = 294912
WS_AP = 491520
WS_GP = 524288
WS_STAMP = 1 << 20
WS_SIZE = 2 << 20
L_CNTM, L_CNTQ, L_STAT = 0, 4, 16
L_Q = 256
L_HS = 1024
L_WQ = 4096
L_WM = 36864
L_WT = 57344
LDS_BYTES = 155648
L_RED = 4096
L_STG = 10240
L_X1 = 13312
L_GA = 15872
L_XS = 18432
L_CB1 = 20992
L_SB = 22272
L_RED2 = 23552
LOG2E = 0x3fb8aa3b
SCALE = 0x3d93cd3a
INV640 = 0x3acccccd
EPS = 0x3727c5ac

a = Asm()
A = a
nlab = [0]
def newlab(p):
    nlab[0] += 1
    return f"L_{p}_{nlab[0]}"

def srd(base, lo, hi, nbytes_or_sreg, off_sreg=None):
    if off_sreg is None:
        A(f"s_mov_b32 s{base}, s{lo}"); A(f"s_and_b32 s{base+1}, s{hi}, 0xffff")
    else:
        A(f"s_add_u32 s{base}, s{lo}, {off_sreg}"); A(f"s_addc_u32 s{base+1}, s{hi}, 0"); A(f"s_and_b32 s{base+1}, s{base+1}, 0xffff")
    A(f"s_mov_b32 s{base+2}, {nbytes_or_sreg}"); A(f"s_mov_b32 s{base+3}, 0x20000")

S_K, S_V, S_WS, S_WT, S_WQ, S_WM, S_X, S_C, S_DBG, S_OUT = 44, 48, 52, 56, 60, 64, 68, 72, 76, 80
def R4(b): return f"s[{b}:{b+3}]"

def bf16r(dst, src, tmp=None):
    A(f"v_cvt_pk_bf16_f32 {dst}, {src}, {src}")
    A(f"v_lshlrev_b32 {dst}, 16, {dst}")

def wave_reduce(op, v, full=True):
    if full:
        A(f"{op}_dpp {v}, {v}, {v} quad_perm:[1,0,3,2] row_mask:0xf bank_mask:0xf")
        A(f"{op}_dpp {v}, {v}, {v} quad_perm:[2,3,0,1] row_mask:0xf bank_mask:0xf")
        A(f"{op}_dpp {v}, {v}, {v} row_half_mirror row_mask:0xf bank_mask:0xf")
    A(f"{op}_dpp {v}, {v}, {v} row_ror:8 row_mask:0xf bank_mask:0xf")
    A(f"{op}_dpp {v}, {v}, {v} row_bcast:15 row_mask:0xa bank_mask:0xf")
    A(f"{op}_dpp {v}, {v}, {v} row_bcast:31 row_mask:0xc bank_mask:0xf")

def poll(loads, regs, tmp, sleep=1):
    lp = newlab("poll"); ld = newlab("polld")
    A(f"s_mov_b32 s90, 0x40000")
    a.label(lp)
    for l in loads: A(l)
    A("s_waitcnt vmcnt(0)")
    rs = list(regs)
    first = True
    cur = rs[0]; rest = rs[1:]
    if not rest:
        A(f"v_mov_b32 {tmp}, {cur}")
    while rest:
        if len(rest) >= 2:
            A(f"v_max3_u32 {tmp}, {cur}, {rest[0]}, {rest[1]}"); rest = rest[2:]
        else:
            A(f"v_max_u32 {tmp}, {cur}, {rest[0]}"); rest = rest[1:]
        cur = tmp
    A(f"v_cmp_eq_u32 vcc, -1, {tmp}")
    A(f"s_cbranch_vccz {ld}")
    A("s_sub_u32 s90, s90, 1")
    A(f"s_cbranch_scc1 {ld}")
    if sleep: A(f"s_sleep {sleep}")
    A(f"s_branch {lp}")
    a.label(ld)

stamp_idx = [0]
def stamp(i):
    if not STAMPS: return
    A("s_memrealtime s[92:93]")
    A("s_waitcnt lgkmcnt(0)")
    A("v_mov_b32 v166, s92"); A("v_mov_b32 v167, s93")
    A(f"s_lshl_b32 s94, s2, 7"); A(f"s_add_u32 s94, s94, {WS_STAMP + i*8}")
    A("v_mov_b32 v165, s94")
    A("s_mov_b64 s[96:97], exec"); A("s_mov_b64 exec, 1")
    A(f"buffer_store_dwordx2 v[166:167], v165, {R4(S_WS)}, 0 offen")
    A("s_mov_b64 exec, s[96:97]")

def div_nr(dst, num, den, t0, t1):
    A(f"v_rcp_f32 {t0}, {den}")
    A(f"v_mul_f32 {dst}, {num}, {t0}")
    A(f"v_fma_f32 {t1}, -{dst}, {den}, {num}")
    A(f"v_fma_f32 {dst}, {t1}, {t0}, {dst}")

hdr = []
hdr.append(f"; @launch grid=(256,1,1) block=(768,1,1) lds={LDS_BYTES}")
hdr.append('.amdgcn_target "amdgcn-amd-amdhsa--gfx950"')
hdr.append(".text"); hdr.append(f".globl {KNAME}"); hdr.append(".p2align 8"); hdr.append(f".type {KNAME},@function"); hdr.append(f"{KNAME}:")

A("s_cmp_ge_u32 s2, 256")
A("s_cbranch_scc1 L_end")
A("s_load_dwordx16 s[16:31], s[0:1], 0")
A("s_load_dwordx8 s[32:39], s[0:1], 64")
A("s_load_dwordx4 s[40:43], s[0:1], 96")
if STAMPS:
    A("s_memrealtime s[98:99]")
A("v_lshrrev_b32 v2, 6, v0")
A("v_and_b32 v1, 63, v0")
A("v_readfirstlane_b32 s3, v2")
A("s_and_b32 s4, s2, 7")
A("s_lshr_b32 s5, s2, 3")
A("s_lshl_b32 s6, s4, 5"); A("s_add_u32 s6, s6, s5")
A("v_mov_b32 v3, 0"); A("v_lshlrev_b32 v4, 2, v1")
A("s_cmp_lg_u32 s3, 0"); A("s_cbranch_scc1 L_noinit")
A("ds_write_b32 v4, v3")
a.label("L_noinit")
A("s_mul_hi_u32 s8, s2, 0x4444445"); A("s_mul_i32 s9, s8, 60"); A("s_sub_u32 s9, s2, s9")
A("s_waitcnt lgkmcnt(0)")
A("s_mul_i32 s84, s5, 12582912"); A("s_mul_i32 s85, s4, 196608"); A("s_add_u32 s84, s84, s85"); A("s_add_u32 s84, s84, 11010048")
srd(S_K, 18, 19, 196608, "s84")
srd(S_V, 20, 21, 196608, "s84")
srd(S_WS, 42, 43, WS_SIZE)
srd(S_WQ, 22, 23, 7864320)
srd(S_WM, 36, 37, 4915200)
srd(S_X, 16, 17, 1280)
srd(S_C, 34, 35, 1280)
srd(S_DBG, 40, 41, 256)
srd(S_OUT, 38, 39, 1280)
A("s_cmp_lt_u32 s6, 120"); A("s_cbranch_scc1 L_roleW")
A("s_cmp_lt_u32 s6, 216"); A("s_cbranch_scc1 L_roleG")
A("s_cmp_lt_u32 s6, 236"); A("s_cbranch_scc1 L_roleD")
A("s_mov_b32 s7, 3"); A("s_mov_b32 s10, 0"); A("s_mov_b32 s11, 0"); A("s_mov_b32 s12, 0")
A("s_mov_b32 s13, 0"); A("s_mov_b32 s14, 0"); A("s_mov_b32 s15, 0x40000000"); A("s_mov_b32 s86, 3"); A("s_mov_b32 s87, 0")
srd(S_WT, 24, 25, 0)
A("s_branch L_roledone")
a.label("L_roleW")
A("s_mov_b32 s7, 0")
A("s_mul_hi_u32 s10, s6, 0x1999999a"); A("s_mul_i32 s11, s10, 10"); A("s_sub_u32 s11, s6, s11")
A("s_mul_i32 s84, s10, 655360"); A("s_lshl_b32 s85, s11, 7"); A("s_add_u32 s84, s84, s85")
A("s_sub_u32 s85, 7864320, s84")
srd(S_WT, 24, 25, "s85", "s84")
A("s_mov_b32 s12, 0")
A("s_mov_b32 s13, 8")
A("s_mov_b32 s14, 10240")
A("s_mul_i32 s15, s10, 2560"); A("s_lshl_b32 s85, s11, 8"); A("s_add_u32 s15, s15, s85"); A(f"s_add_u32 s15, s15, {WS_AP}")
A("s_mov_b32 s86, 3"); A("s_mov_b32 s87, 1280")
A("s_branch L_roledone")
a.label("L_roleG")
A("s_mov_b32 s7, 1")
A("s_sub_u32 s84, s6, 120"); A("s_cmp_ge_u32 s84, 48"); A("s_cselect_b32 s10, 1, 0"); A("s_mul_i32 s85, s10, 48"); A("s_sub_u32 s84, s84, s85")
A("s_lshr_b32 s11, s84, 1"); A("s_and_b32 s12, s84, 1")
A("s_mul_i32 s84, s12, 983040"); A("s_lshl_b32 s85, s11, 7"); A("s_add_u32 s84, s84, s85")
A("s_sub_u32 s85, 1966080, s84")
A("s_cmp_eq_u32 s10, 0"); A("s_cselect_b32 s88, s28, s30"); A("s_cselect_b32 s89, s29, s31")
srd(S_WT, 88, 89, "s85", "s84")
A("s_mov_b32 s13, 5"); A("s_mov_b32 s14, 24576")
A("s_lshl_b32 s15, s12, 1"); A("s_add_u32 s15, s15, s10"); A("s_mul_i32 s15, s15, 6144"); A("s_lshl_b32 s85, s11, 8"); A("s_add_u32 s15, s15, s85"); A(f"s_add_u32 s15, s15, {WS_GP}")
A("s_mov_b32 s86, 3"); A("s_mov_b32 s87, 3072")
A("s_branch L_roledone")
a.label("L_roleD")
A("s_mov_b32 s7, 2")
A("s_sub_u32 s10, s6, 216"); A("s_mov_b32 s11, 0"); A("s_mov_b32 s12, 0")
A("s_lshl_b32 s84, s10, 6"); A("s_sub_u32 s85, 1966080, s84")
srd(S_WT, 32, 33, "s85", "s84")
A("s_mov_b32 s13, 12"); A("s_mov_b32 s14, 20480"); A("s_mov_b32 s15, 0x40000000")
A("s_mov_b32 s86, 2"); A("s_mov_b32 s87, 1280")
a.label("L_roledone")
A("s_waitcnt lgkmcnt(0)")
A("s_barrier")
A("s_cmp_ge_u32 s3, 8"); A("s_cbranch_scc1 L_helper")

KV, ACC, QR, SC, TMP = 8, 104, 128, 140, 148
A("s_cmp_lg_u32 s3, 0"); A("s_cbranch_scc1 L_noclear")
A("v_mov_b32 v8, -1"); A("v_mov_b32 v9, -1"); A("v_mov_b32 v10, -1"); A("v_mov_b32 v11, -1")
A("v_lshlrev_b32 v2, 2, v1"); A("v_lshlrev_b32 v3, 4, v1")
A("s_mul_i32 s84, s8, 15360"); A("s_lshl_b32 s85, s9, 8"); A("s_add_u32 s84, s84, s85")
A("s_cmp_ge_u32 s2, 240"); A("s_cselect_b32 s84, 0x40000000, s84")
A(f"buffer_store_dword v8, v2, {R4(S_WS)}, s84 offen sc1")
A(f"buffer_store_dword v8, v2, {R4(S_WS)}, s15 offen sc1")
A("s_mul_i32 s84, s4, 24576"); A("s_mul_i32 s85, s5, 768"); A("s_add_u32 s84, s84, s85")
A(f"s_add_u32 s85, s84, {WS_QP}"); A(f"s_add_u32 s84, s84, {WS_OP}")
A("s_mov_b32 exec_hi, 0xffff")
A(f"buffer_store_dwordx4 v[8:11], v3, {R4(S_WS)}, s85 offen sc1")
A(f"buffer_store_dwordx4 v[8:11], v3, {R4(S_WS)}, s84 offen sc1")
A("s_lshl_b32 s84, s5, 9"); A("s_lshl_b32 s85, s4, 6"); A("s_add_u32 s84, s84, s85"); A(f"s_add_u32 s84, s84, {WS_ML}")
A("s_mov_b64 exec, 0xf")
A(f"buffer_store_dwordx4 v[8:11], v3, {R4(S_WS)}, s84 offen sc1")
A("s_waitcnt vmcnt(0)")
A("s_mov_b64 exec, 1")
A("v_mov_b32 v8, 1"); A("v_mov_b32 v2, s2")
A(f"buffer_store_byte v8, v2, {R4(S_DBG)}, 0 offen sc1")
A("v_mov_b32 v2, 0"); A(f"ds_add_u32 v2, v8 offset:{L_CNTM}")
A("s_mov_b64 exec, -1")
a.label("L_noclear")
A("v_lshrrev_b32 v2, s86, v1")
A("s_lshl_b32 s84, 1, s86"); A("s_sub_u32 s84, s84, 1")
A("v_and_b32 v3, s84, v1"); A("v_lshlrev_b32 v3, 4, v3")
A("v_mul_lo_u32 v2, v2, s87"); A("v_add_u32 v2, v2, v3")
A("s_mul_i32 s84, s3, s13")
A("s_mul_i32 s85, s84, s14")
A("s_lshl_b32 s84, s84, 10"); A(f"s_add_u32 s84, s84, {L_WT}")
A("s_mov_b32 s88, s13")
A("s_cmp_eq_u32 s88, 0"); A("s_cbranch_scc1 L_dmadone")
a.label("L_dma")
A("s_mov_b32 m0, s84")
A(f"buffer_load_dwordx4 v2, {R4(S_WT)}, s85 offen nt lds")
A("s_add_u32 s84, s84, 1024"); A("s_add_u32 s85, s85, s14")
A("s_sub_u32 s88, s88, 1"); A("s_cmp_lg_u32 s88, 0"); A("s_cbranch_scc1 L_dma")
a.label("L_dmadone")
A("v_lshrrev_b32 v2, 3, v1"); A("v_and_b32 v3, 7, v1")
A("v_mul_u32_u24 v2, 384, v2"); A("v_lshlrev_b32 v4, 4, v3"); A("v_add_u32 v2, v2, v4")
A("s_mul_i32 s84, s3, 3072"); A("v_add_u32 v2, s84, v2")
for g in range(8):
    A(f"s_mov_b32 s84, {g*24576}")
    for i in range(3):
        r = KV + (g*3+i)*4
        A(f"buffer_load_dwordx4 v[{r}:{r+3}], v2, {R4(S_K)}, s84 offen offset:{i*128} nt")
for i in range(24): A(f"v_mov_b32 v{ACC+i}, 0")
A("v_lshlrev_b32 v4, 4, v3")
if STAMPS:
    A("s_cmp_lg_u32 s3, 1"); A("s_cbranch_scc1 L_ns1"); stamp(1); a.label("L_ns1")
A("s_barrier")
for i in range(3):
    A(f"ds_read_b128 v[{QR+4*i}:{QR+4*i+3}], v4 offset:{L_Q + i*128}")
A("s_waitcnt lgkmcnt(0)")
if STAMPS:
    A("s_cmp_lg_u32 s3, 1"); A("s_cbranch_scc1 L_ns2"); stamp(2); a.label("L_ns2")
NST = 0
for g in range(8):
    A("s_waitcnt vmcnt(21)")
    t = [TMP, TMP+1, TMP+2]
    for i in range(3):
        r = KV + (g*3+i)*4
        A(f"v_dot2_f32_bf16 v{t[i]}, v{r}, v{QR+4*i}, 0")
    for j in range(1, 4):
        for i in range(3):
            r = KV + (g*3+i)*4
            A(f"v_dot2c_f32_bf16 v{t[i]}, v{r+j}, v{QR+4*i+j}")
    A(f"s_mov_b32 s84, {g*24576}")
    for i in range(3):
        r = KV + (g*3+i)*4
        A(f"buffer_load_dwordx4 v[{r}:{r+3}], v2, {R4(S_V)}, s84 offen offset:{i*128} nt")
    A(f"v_add_f32 v{t[0]}, v{t[0]}, v{t[1]}")
    A(f"v_add_f32 v{SC+g}, v{t[0]}, v{t[2]}")
for mod in ("quad_perm:[1,0,3,2]", "quad_perm:[2,3,0,1]", "row_half_mirror"):
    for g in range(8):
        A(f"v_add_f32_dpp v{SC+g}, v{SC+g}, v{SC+g} {mod} row_mask:0xf bank_mask:0xf")
A(f"s_mov_b32 s84, {SCALE}"); A("s_mov_b32 s85, 0xffff0000"); A(f"s_mov_b32 s88, {LOG2E}")
for g in range(0, 8, 2):
    A(f"v_cvt_pk_bf16_f32 v{TMP}, v{SC+g}, v{SC+g+1}")
    A(f"v_lshlrev_b32 v{SC+g}, 16, v{TMP}"); A(f"v_and_b32 v{SC+g+1}, s85, v{TMP}")
    A(f"v_mul_f32 v{SC+g}, s84, v{SC+g}"); A(f"v_mul_f32 v{SC+g+1}, s84, v{SC+g+1}")
    A(f"v_cvt_pk_bf16_f32 v{TMP}, v{SC+g}, v{SC+g+1}")
    A(f"v_lshlrev_b32 v{SC+g}, 16, v{TMP}"); A(f"v_and_b32 v{SC+g+1}, s85, v{TMP}")
A(f"v_max3_f32 v{TMP}, v{SC}, v{SC+1}, v{SC+2}"); A(f"v_max3_f32 v{TMP}, v{TMP}, v{SC+3}, v{SC+4}")
A(f"v_max3_f32 v{TMP}, v{TMP}, v{SC+5}, v{SC+6}"); A(f"v_max_f32 v{TMP}, v{TMP}, v{SC+7}")
wave_reduce("v_max_f32", f"v{TMP}", full=False)
A(f"v_readlane_b32 s89, v{TMP}, 63")
A(f"v_mov_b32 v{TMP+1}, 0")
for g in range(8):
    A(f"v_subrev_f32 v{TMP+2+(g&1)}, s89, v{SC+g}")
    A(f"v_mul_f32 v{TMP+2+(g&1)}, s88, v{TMP+2+(g&1)}")
    A(f"v_exp_f32 v{TMP+2+(g&1)}, v{TMP+2+(g&1)}")
    A(f"v_add_f32 v{TMP+1}, v{TMP+1}, v{TMP+2+(g&1)}")
wave_reduce("v_add_f32", f"v{TMP+1}", full=False)
A(f"v_readlane_b32 s91, v{TMP+1}, 63")
A(f"v_mov_b32 v{TMP+2}, s89"); A(f"v_mov_b32 v{TMP+3}, s91")
A(f"v_min_u32 v{TMP+2}, -2, v{TMP+2}"); A(f"v_min_u32 v{TMP+3}, -2, v{TMP+3}")
A("s_lshl_b32 s84, s5, 9"); A("s_lshl_b32 s85, s4, 6"); A("s_add_u32 s84, s84, s85"); A("s_lshl_b32 s85, s3, 3"); A("s_add_u32 s84, s84, s85"); A(f"s_add_u32 s84, s84, {WS_ML}")
A(f"v_mov_b32 v{TMP+4}, 0")
A("s_mov_b64 exec, 1")
A(f"buffer_store_dwordx2 v[{TMP+2}:{TMP+3}], v{TMP+4}, {R4(S_WS)}, s84 offen sc1")
A("s_mov_b64 exec, -1")
if STAMPS:
    A("s_cmp_lg_u32 s3, 1"); A("s_cbranch_scc1 L_ns3"); stamp(3); a.label("L_ns3")
A("s_barrier")
A(f"v_mov_b32 v{TMP}, 0")
A(f"ds_read_b64 v[{TMP+2}:{TMP+3}], v{TMP} offset:{L_STAT}")
A("s_waitcnt lgkmcnt(0)")
if STAMPS:
    A("s_cmp_lg_u32 s3, 1"); A("s_cbranch_scc1 L_ns4"); stamp(4); a.label("L_ns4")
for g in range(8):
    A(f"v_sub_f32 v{SC+g}, v{SC+g}, v{TMP+2}")
    A(f"v_mul_f32 v{SC+g}, s88, v{SC+g}")
    A(f"v_exp_f32 v{SC+g}, v{SC+g}")
    A(f"v_mul_f32 v{SC+g}, v{SC+g}, v{TMP+3}")
    A(f"v_cvt_pk_bf16_f32 v{SC+g}, v{SC+g}, 0")
for g in range(8):
    A(f"s_waitcnt vmcnt({3*(7-g)+1 if g == 0 and False else 3*(7-g)})")
    A(f"v_lshlrev_b32 v{TMP}, 16, v{SC+g}")
    for i in range(3):
        for j in range(4):
            r = KV + (g*3+i)*4 + j
            A(f"v_dot2c_f32_bf16 v{ACC+i*8+2*j}, v{r}, v{SC+g}")
            A(f"v_dot2c_f32_bf16 v{ACC+i*8+2*j+1}, v{r}, v{TMP}")
if STAMPS:
    A("s_cmp_lg_u32 s3, 1"); A("s_cbranch_scc1 L_ns5"); stamp(5); a.label("L_ns5")
for i in range(12): A(f"v_permlane32_swap_b32 v{ACC+i}, v{ACC+i+12}")
for i in range(12): A(f"v_add_f32 v{ACC+i}, v{ACC+i}, v{ACC+i+12}")
for i in range(6): A(f"v_permlane16_swap_b32 v{ACC+i}, v{ACC+i+6}")
for i in range(6): A(f"v_add_f32 v{ACC+i}, v{ACC+i}, v{ACC+i+6}")
for i in range(6): A(f"v_add_f32_dpp v{ACC+i}, v{ACC+i}, v{ACC+i} row_ror:8 row_mask:0xf bank_mask:0xf")
A("v_lshrrev_b32 v5, 4, v1"); A("v_mul_u32_u24 v5, 192, v5"); A("v_lshlrev_b32 v6, 2, v3"); A("v_add_u32 v5, v5, v6")
A("s_mul_i32 s84, s3, 768"); A("v_add_u32 v5, s84, v5")
for i in range(6): A(f"ds_write_b32 v5, v{ACC+i} offset:{L_RED + i*32}")
A("s_waitcnt lgkmcnt(0)")
A("s_barrier")
A("s_cmp_ge_u32 s3, 3"); A("s_cbranch_scc1 L_tail")
A("v_lshlrev_b32 v5, 2, v0")
for w in range(8): A(f"ds_read_b32 v{8+w}, v5 offset:{L_RED + w*768}")
A("v_and_b32 v6, 0xc0, v0"); A("v_and_b32 v7, 7, v0"); A("v_lshlrev_b32 v7, 3, v7"); A("v_add_u32 v6, v6, v7")
A("v_bfe_u32 v7, v0, 3, 3"); A("v_add_u32 v6, v6, v7"); A("v_lshlrev_b32 v6, 2, v6")
A("s_mul_i32 s84, s4, 24576"); A("s_mul_i32 s85, s5, 768"); A("s_add_u32 s84, s84, s85"); A(f"s_add_u32 s84, s84, {WS_OP}")
A("s_waitcnt lgkmcnt(0)")
for w in range(1, 8): A(f"v_add_f32 v8, v8, v{8+w}")
A("v_min_u32 v8, -2, v8")
A(f"buffer_store_dword v8, v6, {R4(S_WS)}, s84 offen sc1")
if STAMPS:
    A("s_cmp_lg_u32 s3, 1"); A("s_cbranch_scc1 L_ns6"); stamp(6); a.label("L_ns6")
A("s_branch L_tail")

a.label("L_helper")
A("s_setprio 2")
A("s_sub_u32 s91, s3, 8")
A("v_lshlrev_b32 v2, 3, v1")
A("s_mul_i32 s84, s8, 320")
A(f"buffer_load_dwordx2 v[8:9], v2, {R4(S_C)}, s84 offen")
A("v_lshlrev_b32 v3, 4, v1")
A(f"buffer_load_dwordx4 v[12:15], v3, {R4(S_X)}, 0 offen")
A(f"buffer_load_dwordx4 v[16:19], v3, {R4(S_X)}, 0 offen offset:1024")
A("v_lshlrev_b32 v4, 1, v1"); A("s_mul_i32 s84, s4, 160")
A(f"buffer_load_ushort v20, v4, {R4(S_X)}, s84 offen")
A(f"buffer_load_ushort v21, v4, {R4(S_X)}, s84 offen offset:128")
A("v_lshrrev_b32 v5, 3, v1"); A("v_and_b32 v6, 7, v1"); A("v_lshlrev_b32 v6, 4, v6")
A("v_mul_u32_u24 v7, 7680, v5"); A("v_add_u32 v7, v7, v6")
A("s_cmp_ge_u32 s2, 240"); A("s_cbranch_scc1 L_h_nom1")
A("s_mul_i32 s84, s8, 160"); A("s_mul_i32 s85, s91, 40"); A("s_add_u32 s84, s84, s85"); A("s_mul_i32 s84, s84, 7680"); A("s_lshl_b32 s88, s9, 7"); A("s_add_u32 s84, s84, s88")
A("s_mul_i32 s85, s91, 5120"); A(f"s_add_u32 s85, s85, {L_WM}")
for i in range(5):
    A("s_mov_b32 m0, s85")
    A(f"buffer_load_dwordx4 v7, {R4(S_WM)}, s84 offen nt lds")
    if i < 4:
        A("s_add_u32 s84, s84, 61440"); A("s_add_u32 s85, s85, 1024")
a.label("L_h_nom1")
for i in range(3):
    A(f"v_add_u32 v22, {64*i}, v1"); A("v_mul_u32_u24 v23, 2731, v22"); A("v_lshrrev_b32 v23, 16, v23")
    A("v_mul_u32_u24 v24, 24, v23"); A("v_sub_u32 v24, v22, v24"); A("v_lshlrev_b32 v24, 4, v24")
    A("v_mul_u32_u24 v23, 12288, v23"); A(f"v_add_u32 v{25+i}, v23, v24")
A("s_mul_i32 s84, s4, 80"); A("s_mul_i32 s85, s91, 20"); A("s_add_u32 s84, s84, s85"); A("s_mul_i32 s84, s84, 12288"); A("s_mul_i32 s88, s5, 384"); A("s_add_u32 s84, s84, s88")
A("s_mul_i32 s85, s91, 7680"); A(f"s_add_u32 s85, s85, {L_WQ}")
for i in range(8):
    if i == 7: A("s_mov_b32 exec_hi, 0")
    A("s_mov_b32 m0, s85")
    A(f"buffer_load_dwordx4 v{25+i%3}, {R4(S_WQ)}, s84 offen nt lds")
    if i < 7:
        A("s_add_u32 s85, s85, 1024")
        if i % 3 == 2: A("s_add_u32 s84, s84, 98304")
A("s_mov_b64 exec, -1")
A("v_lshrrev_b32 v28, 4, v1")
A("v_and_b32 v29, 15, v1")
A("v_lshrrev_b32 v30, 2, v29")
A("v_and_b32 v31, 3, v29")
A("v_lshlrev_b32 v31, 3, v31")
A(f"s_lshl_b32 s85, s91, 9"); A(f"s_add_u32 s85, s85, {L_HS}")
A("s_cmp_ge_u32 s2, 240"); A("s_cbranch_scc1 L_h_nom2")
A("s_waitcnt vmcnt(17)")
A(f"s_mov_b32 s84, {LOG2E}")
A("v_lshlrev_b32 v32, 16, v8"); A("v_and_b32 v33, 0xffff0000, v8"); A("v_lshlrev_b32 v34, 16, v9"); A("v_and_b32 v35, 0xffff0000, v9")
for k in range(4):
    A(f"v_mul_f32 v{36+k}, s84, v{32+k}")
    A(f"v_exp_f32 v{36+k}, -v{36+k}")
    A(f"v_add_f32 v{36+k}, 1.0, v{36+k}")
    div_nr(f"v{40+k}", f"v{32+k}", f"v{36+k}", "v44", "v45")
A("v_cvt_pk_bf16_f32 v32, v40, v41"); A("v_cvt_pk_bf16_f32 v33, v42, v43")
A("v_add_u32 v34, s85, v2")
A("s_mov_b32 exec_hi, 0xff")
A("ds_write_b64 v34, v[32:33]")
A("s_mov_b64 exec, -1")
A("v_lshlrev_b32 v34, 4, v28"); A("v_add_u32 v34, s85, v34")
A("s_waitcnt lgkmcnt(0)")
for t in range(5): A(f"ds_read_b128 v[{48+4*t}:{51+4*t}], v34 offset:{64*t}")
A("s_waitcnt vmcnt(8)")
A("v_mov_b32 v35, 0"); A("v_mov_b32 v36, 1")
A("s_mov_b64 exec, 1"); A(f"ds_add_u32 v35, v36 offset:{L_CNTM}"); A("s_mov_b64 exec, -1")
a.label("L_h_syncm")
A(f"ds_read_b32 v36, v35 offset:{L_CNTM}"); A("s_waitcnt lgkmcnt(0)")
A("v_readfirstlane_b32 s84, v36"); A("s_cmp_lt_u32 s84, 5"); A("s_cbranch_scc1 L_h_syncm")
A("v_lshlrev_b32 v34, 3, v28"); A("v_add_u32 v34, v34, v30"); A("v_lshlrev_b32 v34, 7, v34"); A("v_add_u32 v34, v34, v31")
A(f"s_lshl_b32 s84, s91, 5"); A(f"s_add_u32 s84, s84, {L_WM}"); A("v_add_u32 v34, s84, v34")
for t in range(5):
    A(f"ds_read_b64_tr_b16 v[{68+4*t}:{69+4*t}], v34 offset:{t*4096}")
    A(f"ds_read_b64_tr_b16 v[{70+4*t}:{71+4*t}], v34 offset:{t*4096+512}")
A("s_waitcnt lgkmcnt(0)")
for t in range(5):
    A(f"v_mfma_f32_16x16x32_bf16 v[88:91], v[{48+4*t}:{51+4*t}], v[{68+4*t}:{71+4*t}], " + ("0" if t == 0 else "v[88:91]"))
A("v_min_u32 v88, -2, v88")
A("s_mul_i32 s84, s8, 15360"); A("s_lshl_b32 s88, s9, 8"); A("s_add_u32 s84, s84, s88"); A("s_lshl_b32 s88, s91, 6"); A("s_add_u32 s84, s84, s88")
A("v_lshlrev_b32 v34, 2, v1")
A("s_mov_b64 exec, 0xffff")
A(f"buffer_store_dword v88, v34, {R4(S_WS)}, s84 offen sc1")
A("s_mov_b64 exec, -1")
a.label("L_h_nom2")
if STAMPS:
    A("s_cmp_lg_u32 s3, 8"); A("s_cbranch_scc1 L_ns8"); stamp(8); a.label("L_ns8")
A("s_waitcnt vmcnt(8)")
for k in range(4):
    A(f"v_lshlrev_b32 v{32+2*k}, 16, v{12+k}"); A(f"v_and_b32 v{33+2*k}, 0xffff0000, v{12+k}")
    A(f"v_lshlrev_b32 v{40+2*k}, 16, v{16+k}"); A(f"v_and_b32 v{41+2*k}, 0xffff0000, v{16+k}")
def ln_stats(vals, nvalid_mask_regs, sum_t):
    pass
A("v_add_f32 v48, v32, v33")
for k in range(2, 16): A(f"v_add_f32 v48, v48, v{32+k}")
wave_reduce("v_add_f32", "v48")
A("v_readlane_b32 s84, v48, 63")
A(f"v_mov_b32 v49, {INV640}"); A("v_mul_f32 v49, s84, v49")
A("v_cmp_gt_u32 vcc, 16, v1")
for k in range(8): A(f"v_cndmask_b32 v{40+k}, v49, v{40+k}, vcc")
A("v_mov_b32 v48, 0")
for k in range(16):
    A(f"v_sub_f32 v50, v{32+k}, v49"); A("v_fmac_f32 v48, v50, v50")
wave_reduce("v_add_f32", "v48")
A("v_readlane_b32 s84, v48, 63")
A(f"v_mov_b32 v50, {INV640}"); A("v_mul_f32 v50, s84, v50")
bf16r("v49", "v49"); bf16r("v50", "v50")
A(f"v_add_f32 v50, {EPS:#x}, v50"); bf16r("v50", "v50")
A("v_sqrt_f32 v50, v50"); bf16r("v50", "v50")
for e in range(2):
    A(f"v_lshlrev_b32 v{20+e}, 16, v{20+e}")
    A(f"v_sub_f32 v{20+e}, v{20+e}, v49"); bf16r(f"v{20+e}", f"v{20+e}")
    div_nr(f"v{52+e}", f"v{20+e}", "v50", "v54", "v55"); bf16r(f"v{52+e}", f"v{52+e}")
lp = "L_h_flags"
A("s_mov_b32 s90, 0x40000"); A("v_lshlrev_b32 v34, 2, v1")
a.label(lp)
A(f"buffer_load_dword v35, v34, {R4(S_DBG)}, 0 offen sc1"); A("s_waitcnt vmcnt(0)")
A("v_cmp_ne_u32 vcc, 0x01010101, v35"); A("s_cbranch_vccz L_h_flagsd")
A("s_sub_u32 s90, s90, 1"); A("s_cbranch_scc1 L_h_flagsd"); A("s_sleep 2"); A(f"s_branch {lp}")
a.label("L_h_flagsd")
if STAMPS:
    A("s_cmp_lg_u32 s3, 8"); A("s_cbranch_scc1 L_ns9"); stamp(9); a.label("L_ns9")
A("v_lshlrev_b32 v34, 2, v1"); A("s_mul_i32 s84, s4, 320")
lds_ = []; regs = []
for ks in range(4):
    A(f"s_add_u32 s{60+0}, s84, 0") if False else None
for ks in range(4):
    A(f"v_add_u32 v{36+ks}, {ks*15360}, v34")
for ks in range(4):
    for e in range(2):
        for which in range(2):
            r = 56 + ks*4 + e*2 + which
            lds_.append(f"buffer_load_dword v{r}, v{36+ks}, {R4(S_WS)}, s84 offen offset:{e*256 + which*2560} sc1")
            regs.append(f"v{r}")
poll(lds_, regs, "v35")
for e in range(2):
    for which in range(2):
        r0 = 56 + e*2 + which
        for ks in range(1, 4): A(f"v_add_f32 v{r0}, v{r0}, v{r0+4*ks}")
        bf16r(f"v{r0}", f"v{r0}")
    sa, ca = 56 + e*2, 57 + e*2
    A(f"v_add_f32 v{ca}, 1.0, v{ca}"); bf16r(f"v{ca}", f"v{ca}")
    A(f"v_mul_f32 v{52+e}, v{52+e}, v{ca}"); bf16r(f"v{52+e}", f"v{52+e}")
    A(f"v_add_f32 v{52+e}, v{52+e}, v{sa}")
    A(f"v_cvt_pk_bf16_f32 v{52+e}, v{52+e}, v{52+e}")
A("v_add_u32 v34, s85, v4")
A("ds_write_b16 v34, v52")
A("s_mov_b64 exec, 0xffff"); A("ds_write_b16 v34, v53 offset:128"); A("s_mov_b64 exec, -1")
A("v_lshlrev_b32 v34, 3, v28"); A("v_add_u32 v34, s85, v34")
A("s_waitcnt lgkmcnt(0)")
for t in range(5): A(f"ds_read_b64 v[{56+2*t}:{57+2*t}], v34 offset:{32*t}")
A("v_mov_b32 v35, 0"); A("v_mov_b32 v36, 1")
A("s_mov_b64 exec, 1"); A(f"ds_add_u32 v35, v36 offset:{L_CNTQ}"); A("s_mov_b64 exec, -1")
a.label("L_h_syncq")
A(f"ds_read_b32 v36, v35 offset:{L_CNTQ}"); A("s_waitcnt lgkmcnt(0)")
A("v_readfirstlane_b32 s84, v36"); A("s_cmp_lt_u32 s84, 4"); A("s_cbranch_scc1 L_h_syncq")
A("v_lshlrev_b32 v34, 2, v28"); A("v_add_u32 v34, v34, v30"); A("v_mul_u32_u24 v34, 384, v34"); A("v_add_u32 v34, v34, v31")
A("s_mul_i32 s84, s91, 96"); A(f"s_add_u32 s84, s84, {L_WQ}"); A("v_add_u32 v34, s84, v34")
for tt in range(3):
    for t in range(5):
        r = 68 + (tt*5+t)*2
        A(f"ds_read_b64_tr_b16 v[{r}:{r+1}], v34 offset:{t*6144 + tt*32}")
A("s_waitcnt lgkmcnt(0)")
for t in range(5):
    for tt in range(3):
        r = 68 + (tt*5+t)*2
        d = 100 + 4*tt
        A(f"v_mfma_f32_16x16x16_bf16 v[{d}:{d+3}], v[{56+2*t}:{57+2*t}], v[{r}:{r+1}], " + ("0" if t == 0 else f"v[{d}:{d+3}]"))
A("v_cmp_eq_u32 vcc, 1, v28"); A("v_cndmask_b32 v34, v100, v104, vcc")
A("v_cmp_eq_u32 vcc, 2, v28"); A("v_cndmask_b32 v34, v34, v108, vcc")
A("v_min_u32 v34, -2, v34")
A("s_mul_i32 s84, s4, 24576"); A("s_mul_i32 s88, s5, 768"); A("s_add_u32 s84, s84, s88"); A("s_mul_i32 s88, s91, 192"); A("s_add_u32 s84, s84, s88"); A(f"s_add_u32 s84, s84, {WS_QP}")
A("v_lshlrev_b32 v35, 2, v1")
A("s_mov_b32 exec_hi, 0xffff")
A(f"buffer_store_dword v34, v35, {R4(S_WS)}, s84 offen sc1")
A("s_mov_b64 exec, -1")
if STAMPS:
    A("s_cmp_lg_u32 s3, 8"); A("s_cbranch_scc1 L_ns10"); stamp(10); a.label("L_ns10")
A("s_cmp_ge_u32 s91, 3"); A("s_cbranch_scc1 L_h_b1")
A("s_mul_i32 s84, s5, 768"); A("s_lshl_b32 s88, s91, 8"); A("s_add_u32 s84, s84, s88"); A(f"s_add_u32 s84, s84, {WS_QP}")
for s_ in range(8): A(f"v_add_u32 v{36+s_}, {s_*24576}, v35")
poll([f"buffer_load_dword v{48+s_}, v{36+s_}, {R4(S_WS)}, s84 offen sc1" for s_ in range(8)], [f"v{48+s_}" for s_ in range(8)], "v34")
for s_ in range(1, 8): A(f"v_add_f32 v48, v48, v{48+s_}")
A("v_cvt_pk_bf16_f32 v48, v48, v48")
A("s_lshl_b32 s84, s91, 7"); A("v_add_u32 v34, s84, v4")
A(f"ds_write_b16 v34, v48 offset:{L_Q}")
A("s_waitcnt lgkmcnt(0)")
a.label("L_h_b1")
A("s_barrier")
A("v_subrev_u32 v2, 512, v0")
A("s_cmp_eq_u32 s7, 1"); A("s_cbranch_scc0 L_h_noG")
for r in range(3):
    A(f"v_add_u32 v3, {256*r}, v2"); A("v_lshlrev_b32 v4, 2, v3"); A("v_lshlrev_b32 v5, 1, v3")
    if r == 2:
        A("v_cmp_gt_u32 vcc, 640, v3"); A("s_and_saveexec_b64 s[88:89], vcc"); A("s_cbranch_execz L_h_g2skip")
    for ks in range(4): A(f"v_add_u32 v{8+ks}, {ks*15360}, v4")
    A(f"buffer_load_ushort v16, v5, {R4(S_X)}, 0 offen")
    A(f"s_mov_b32 s84, {1280*4}")
    poll([f"buffer_load_dword v{12+ks}, v{8+ks}, {R4(S_WS)}, s84 offen sc1" for ks in range(4)], [f"v{12+ks}" for ks in range(4)], "v17")
    A("v_add_f32 v12, v12, v13"); A("v_add_f32 v12, v12, v14"); A("v_add_f32 v12, v12, v15"); bf16r("v12", "v12")
    A("v_lshlrev_b32 v16, 16, v16")
    A(f"ds_write_b32 v4, v12 offset:{L_GA}"); A(f"ds_write_b32 v4, v16 offset:{L_XS}")
    if r == 2:
        a.label("L_h_g2skip"); A("s_mov_b64 exec, s[88:89]")
for r in range(2):
    A(f"v_add_u32 v3, {256*r}, v2"); A("v_lshlrev_b32 v4, 2, v3")
    if r == 1:
        A("v_cmp_gt_u32 vcc, 320, v3"); A("s_and_saveexec_b64 s[88:89], vcc"); A("s_cbranch_execz L_h_g3skip")
    for ks in range(4): A(f"v_add_u32 v{8+ks}, {ks*15360}, v4")
    A("s_mul_i32 s84, s12, 1280"); A(f"s_add_u32 s84, s84, {1920*4}")
    poll([f"buffer_load_dword v{12+ks}, v{8+ks}, {R4(S_WS)}, s84 offen sc1" for ks in range(4)] +
         [f"buffer_load_dword v{16+ks}, v{8+ks}, {R4(S_WS)}, s84 offen offset:2560 sc1" for ks in range(4)], [f"v{12+k}" for k in range(8)], "v20")
    A("v_add_f32 v12, v12, v13"); A("v_add_f32 v12, v12, v14"); A("v_add_f32 v12, v12, v15"); bf16r("v12", "v12")
    A("v_add_f32 v16, v16, v17"); A("v_add_f32 v16, v16, v18"); A("v_add_f32 v16, v16, v19"); bf16r("v16", "v16")
    A("v_add_f32 v16, 1.0, v16"); bf16r("v16", "v16")
    A(f"ds_write_b32 v4, v12 offset:{L_SB}"); A(f"ds_write_b32 v4, v16 offset:{L_CB1}")
    if r == 1:
        a.label("L_h_g3skip"); A("s_mov_b64 exec, s[88:89]")
a.label("L_h_noG")
A("s_cmp_eq_u32 s7, 2"); A("s_cbranch_scc0 L_h_noD")
A("s_cmp_eq_u32 s3, 8"); A("s_cbranch_scc0 L_h_noD")
A("v_and_b32 v3, 31, v1"); A("s_lshl_b32 s84, s10, 5"); A("v_add_u32 v3, s84, v3")
A("v_lshlrev_b32 v4, 2, v3"); A("v_lshlrev_b32 v5, 1, v3")
for ks in range(4): A(f"v_add_u32 v{8+ks}, {ks*15360}, v4")
A(f"buffer_load_ushort v20, v5, {R4(S_X)}, 0 offen")
A(f"s_mov_b32 s84, {1280*4}"); A(f"s_mov_b32 s88, {3200*4}")
poll([f"buffer_load_dword v{12+ks}, v{8+ks}, {R4(S_WS)}, s84 offen sc1" for ks in range(4)] +
     [f"buffer_load_dword v{16+ks}, v{8+ks}, {R4(S_WS)}, s88 offen sc1" for ks in range(4)], [f"v{12+k}" for k in range(8)], "v21")
A("v_add_f32 v12, v12, v13"); A("v_add_f32 v12, v12, v14"); A("v_add_f32 v12, v12, v15"); bf16r("v12", "v12")
A("v_add_f32 v16, v16, v17"); A("v_add_f32 v16, v16, v18"); A("v_add_f32 v16, v16, v19"); bf16r("v16", "v16")
A("v_lshlrev_b32 v20, 16, v20")
A("v_lshlrev_b32 v4, 2, v1")
A("s_mov_b32 exec_hi, 0")
A(f"ds_write_b32 v4, v12 offset:{L_GA}"); A(f"ds_write_b32 v4, v16 offset:{L_SB}"); A(f"ds_write_b32 v4, v20 offset:{L_XS}")
A("s_mov_b64 exec, -1")
a.label("L_h_noD")
A("s_cmp_eq_u32 s3, 8"); A("s_cbranch_scc0 L_h_b3")
A("v_lshlrev_b32 v4, 3, v1"); A("s_lshl_b32 s84, s5, 9"); A(f"s_add_u32 s84, s84, {WS_ML}")
poll([f"buffer_load_dwordx2 v[8:9], v4, {R4(S_WS)}, s84 offen sc1"], ["v8", "v9"], "v10")
A("v_mov_b32 v10, v8")
wave_reduce("v_max_f32", "v10")
A("v_readlane_b32 s84, v10, 63")
A(f"s_mov_b32 s88, {LOG2E}")
A("v_subrev_f32 v10, s84, v8"); A("v_mul_f32 v10, s88, v10"); A("v_exp_f32 v10, v10"); A("v_mul_f32 v10, v10, v9")
wave_reduce("v_add_f32", "v10")
A("v_readlane_b32 s88, v10, 63")
A("v_mov_b32 v11, s88"); A("v_mov_b32 v14, 1.0")
div_nr("v13", "v14", "v11", "v15", "v16")
A("v_mov_b32 v12, s84"); A("v_mov_b32 v14, 0")
A("s_mov_b64 exec, 1"); A(f"ds_write_b64 v14, v[12:13] offset:{L_STAT}"); A("s_mov_b64 exec, -1")
a.label("L_h_b3")
A("s_waitcnt lgkmcnt(0)")
if STAMPS:
    A("s_cmp_lg_u32 s3, 8"); A("s_cbranch_scc1 L_ns11"); stamp(11); a.label("L_ns11")
A("s_barrier")
A("s_barrier")
a.label("L_tail")
A("s_setprio 2")
A("v_lshrrev_b32 v28, 4, v1"); A("v_and_b32 v29, 15, v1"); A("v_lshrrev_b32 v30, 2, v29"); A("v_and_b32 v31, 3, v29"); A("v_lshlrev_b32 v31, 3, v31")
A("v_lshlrev_b32 v27, 2, v1")
A("s_lshl_b32 s85, s3, 8"); A(f"s_add_u32 s85, s85, {L_STG}")
A("s_cmp_eq_u32 s7, 0"); A("s_cbranch_scc1 L_tW")
A("s_cmp_eq_u32 s7, 1"); A("s_cbranch_scc1 L_tG")
A("s_cmp_eq_u32 s7, 2"); A("s_cbranch_scc1 L_tD")
A("s_branch L_end")

def frags128(nk):
    A("v_lshlrev_b32 v26, 3, v28"); A("v_add_u32 v26, v26, v30"); A("v_lshlrev_b32 v26, 7, v26"); A("v_add_u32 v26, v26, v31")
    A("s_lshl_b32 s84, s3, 13"); A(f"s_add_u32 s84, s84, {L_WT}"); A("v_add_u32 v26, s84, v26")
    for kk in range(nk):
        for t in range(4):
            r = 32 + (kk*4+t)*4
            A(f"ds_read_b64_tr_b16 v[{r}:{r+1}], v26 offset:{kk*4096 + t*32}")
            A(f"ds_read_b64_tr_b16 v[{r+2}:{r+3}], v26 offset:{kk*4096 + 512 + t*32}")

def mfma_tiles(nk, nt, abase, dbase):
    for kk in range(nk):
        for t in range(nt):
            r = 32 + (kk*nt+t)*4; d = dbase + 4*t
            A(f"v_mfma_f32_16x16x32_bf16 v[{d}:{d+3}], v[{abase+4*kk}:{abase+4*kk+3}], v[{r}:{r+3}], " + ("0" if kk == 0 else f"v[{d}:{d+3}]"))

def select4(dst, dbase, nt):
    A(f"v_mov_b32 {dst}, v{dbase}")
    for t in range(1, nt):
        A(f"v_cmp_eq_u32 vcc, {t}, v28"); A(f"v_cndmask_b32 {dst}, {dst}, v{dbase+4*t}, vcc")

a.label("L_tW")
A("s_cmp_ge_u32 s3, 8"); A("s_cbranch_scc1 L_end")
frags128(2)
A("s_lshl_b32 s84, s10, 11"); A("s_lshl_b32 s88, s3, 8"); A("s_add_u32 s84, s84, s88"); A(f"s_add_u32 s84, s84, {WS_OP}")
for s_ in range(8): A(f"v_add_u32 v{8+s_}, {s_*24576}, v27")
poll([f"buffer_load_dword v{16+s_}, v{8+s_}, {R4(S_WS)}, s84 offen sc1" for s_ in range(8)], [f"v{16+s_}" for s_ in range(8)], "v24", sleep=0)
if STAMPS:
    A("s_cmp_lg_u32 s3, 1"); A("s_cbranch_scc1 L_ns7"); stamp(7); a.label("L_ns7")
for s_ in range(1, 8): A(f"v_add_f32 v16, v16, v{16+s_}")
A("v_cvt_pk_bf16_f32 v16, v16, v16")
A("v_lshlrev_b32 v24, 1, v1"); A("v_add_u32 v24, s85, v24"); A("ds_write_b16 v24, v16")
A("v_lshlrev_b32 v24, 4, v28"); A("v_add_u32 v24, s85, v24")
A("s_waitcnt lgkmcnt(0)")
A("ds_read_b128 v[8:11], v24"); A("ds_read_b128 v[12:15], v24 offset:64")
A("s_waitcnt lgkmcnt(0)")
mfma_tiles(2, 4, 8, 96)
select4("v16", 96, 4)
A("s_lshl_b32 s84, s3, 8"); A("v_add_u32 v24, s84, v27"); A(f"ds_write_b32 v24, v16 offset:{L_RED2}")
A("s_waitcnt lgkmcnt(0)")
A("s_barrier")
A("s_cmp_lg_u32 s3, 0"); A("s_cbranch_scc1 L_end")
for w in range(8): A(f"ds_read_b32 v{8+w}, v27 offset:{L_RED2 + w*256}")
A("s_waitcnt lgkmcnt(0)")
for w in range(1, 8): A(f"v_add_f32 v8, v8, v{8+w}")
A("v_min_u32 v8, -2, v8")
A(f"buffer_store_dword v8, v27, {R4(S_WS)}, s15 offen sc1")
if STAMPS: stamp(12)
A("s_branch L_end")
a.label("L_tG")
A("s_cmp_ge_u32 s3, 10"); A("s_cbranch_scc1 L_end")
A("s_cmp_ge_u32 s3, 5"); A("s_cbranch_scc1 L_tG_nofrag")
frags128(2)
a.label("L_tG_nofrag")
A("s_lshl_b32 s84, s3, 8"); A("v_add_u32 v25, s84, v27")
A(f"ds_read_b32 v22, v25 offset:{L_GA}"); A(f"ds_read_b32 v23, v25 offset:{L_XS}")
for r in range(12): A(f"v_add_u32 v{64+r}, {r*2560}, v25")
A(f"s_mov_b32 s84, {WS_AP}")
poll([f"buffer_load_dword v{8+r}, v{64+r}, {R4(S_WS)}, s84 offen sc1" for r in range(12)], [f"v{8+r}" for r in range(12)], "v24", sleep=0)
if STAMPS:
    A("s_cmp_lg_u32 s3, 1"); A("s_cbranch_scc1 L_ns7g"); stamp(7); a.label("L_ns7g")
for r in range(1, 12): A(f"v_add_f32 v8, v8, v{8+r}")
bf16r("v8", "v8")
A("s_waitcnt lgkmcnt(0)")
A("v_mul_f32 v8, v22, v8"); bf16r("v8", "v8")
A("v_add_f32 v8, v23, v8"); bf16r("v8", "v8")
A(f"ds_write_b32 v25, v8 offset:{L_X1}")
A("s_waitcnt lgkmcnt(0)")
A("s_barrier")
A("s_cmp_ge_u32 s3, 5"); A("s_cbranch_scc1 L_end")
A("v_lshlrev_b32 v24, 4, v1"); A("v_lshlrev_b32 v25, 3, v1")
A(f"ds_read_b128 v[8:11], v24 offset:{L_X1}"); A(f"ds_read_b128 v[12:15], v24 offset:{L_X1+1024}"); A(f"ds_read_b64 v[16:17], v25 offset:{L_X1+2048}")
A("s_lshl_b32 s84, s3, 8"); A("v_add_u32 v24, s84, v27")
A("s_mul_i32 s84, s12, 1280"); A("v_add_u32 v25, s84, v24")
A(f"ds_read_b32 v20, v25 offset:{L_X1}"); A(f"ds_read_b32 v21, v24 offset:{L_CB1}"); A(f"ds_read_b32 v22, v24 offset:{L_SB}")
A("s_waitcnt lgkmcnt(0)")
A("v_add_f32 v18, v8, v9")
for k in range(2, 10): A(f"v_add_f32 v18, v18, v{8+k}")
wave_reduce("v_add_f32", "v18")
A("v_readlane_b32 s84, v18, 63")
A(f"v_mov_b32 v19, {INV640}"); A("v_mul_f32 v19, s84, v19")
A("v_mov_b32 v18, 0")
for k in range(10):
    A(f"v_sub_f32 v23, v{8+k}, v19"); A("v_fmac_f32 v18, v23, v23")
wave_reduce("v_add_f32", "v18")
A("v_readlane_b32 s84, v18, 63")
A(f"v_mov_b32 v18, {INV640}"); A("v_mul_f32 v18, s84, v18")
bf16r("v19", "v19"); bf16r("v18", "v18")
A(f"v_add_f32 v18, {EPS:#x}, v18"); bf16r("v18", "v18")
A("v_sqrt_f32 v18, v18"); bf16r("v18", "v18")
A("v_sub_f32 v20, v20, v19"); bf16r("v20", "v20")
div_nr("v23", "v20", "v18", "v24", "v25"); bf16r("v23", "v23")
A("v_mul_f32 v23, v23, v21"); bf16r("v23", "v23")
A("v_add_f32 v23, v23, v22"); A("v_cvt_pk_bf16_f32 v23, v23, v23")
A("v_lshlrev_b32 v24, 1, v1"); A("v_add_u32 v24, s85, v24"); A("ds_write_b16 v24, v23")
A("v_lshlrev_b32 v24, 4, v28"); A("v_add_u32 v24, s85, v24")
A("s_waitcnt lgkmcnt(0)")
A("ds_read_b128 v[8:11], v24"); A("ds_read_b128 v[12:15], v24 offset:64")
A("s_waitcnt lgkmcnt(0)")
mfma_tiles(2, 4, 8, 96)
select4("v16", 96, 4)
A("s_lshl_b32 s84, s3, 8"); A("v_add_u32 v24, s84, v27"); A(f"ds_write_b32 v24, v16 offset:{L_RED2}")
A("s_waitcnt lgkmcnt(0)")
A("s_barrier")
A("s_cmp_lg_u32 s3, 0"); A("s_cbranch_scc1 L_end")
for w in range(5): A(f"ds_read_b32 v{8+w}, v27 offset:{L_RED2 + w*256}")
A("s_waitcnt lgkmcnt(0)")
for w in range(1, 5): A(f"v_add_f32 v8, v8, v{8+w}")
A("v_min_u32 v8, -2, v8")
A(f"buffer_store_dword v8, v27, {R4(S_WS)}, s15 offen sc1")
if STAMPS: stamp(12)
A("s_branch L_end")
a.label("L_tD")
A("v_lshlrev_b32 v26, 3, v28"); A("v_add_u32 v26, v26, v30"); A("v_lshlrev_b32 v26, 6, v26"); A("v_add_u32 v26, v26, v31")
A("s_lshl_b32 s84, s3, 13"); A(f"s_add_u32 s84, s84, {L_WT}"); A("v_add_u32 v26, s84, v26")
for kk in range(4):
    for t in range(2):
        r = 32 + (kk*2+t)*4
        A(f"ds_read_b64_tr_b16 v[{r}:{r+1}], v26 offset:{kk*2048 + t*32}")
        A(f"ds_read_b64_tr_b16 v[{r+2}:{r+3}], v26 offset:{kk*2048 + 256 + t*32}")
A("s_cmp_lg_u32 s3, 0"); A("s_cbranch_scc1 L_tD_nox1")
A("v_and_b32 v25, 31, v1"); A("v_lshlrev_b32 v25, 2, v25")
A(f"ds_read_b32 v100, v25 offset:{L_GA}"); A(f"ds_read_b32 v101, v25 offset:{L_XS}"); A(f"ds_read_b32 v102, v25 offset:{L_SB}")
A("s_lshl_b32 s84, s10, 7"); A(f"s_add_u32 s84, s84, {WS_AP}")
for r in range(12): A(f"v_add_u32 v{64+r}, {r*2560}, v25")
poll([f"buffer_load_dword v{8+r}, v{64+r}, {R4(S_WS)}, s84 offen sc1" for r in range(12)], [f"v{8+r}" for r in range(12)], "v24", sleep=0)
for r in range(1, 12): A(f"v_add_f32 v8, v8, v{8+r}")
bf16r("v8", "v8")
A("s_waitcnt lgkmcnt(0)")
A("v_mul_f32 v8, v100, v8"); bf16r("v8", "v8")
A("v_add_f32 v101, v101, v8"); bf16r("v101", "v101")
a.label("L_tD_nox1")
A("v_lshlrev_b32 v25, 3, v1"); A("s_lshl_b32 s84, s3, 9"); A("v_add_u32 v25, s84, v25")
for q_ in range(4): A(f"v_add_u32 v{64+q_}, {q_*6144}, v25")
A(f"s_mov_b32 s84, {WS_GP}")
poll([f"buffer_load_dwordx2 v[{8+2*q_}:{9+2*q_}], v{64+q_}, {R4(S_WS)}, s84 offen sc1" for q_ in range(4)], [f"v{8+k}" for k in range(8)], "v24", sleep=0)
if STAMPS:
    A("s_cmp_lg_u32 s3, 1"); A("s_cbranch_scc1 L_ns7d"); stamp(7); a.label("L_ns7d")
A("v_add_f32 v8, v8, v12"); A("v_add_f32 v9, v9, v13"); A("v_add_f32 v10, v10, v14"); A("v_add_f32 v11, v11, v15")
A("v_cvt_pk_bf16_f32 v8, v8, v9"); A("v_cvt_pk_bf16_f32 v10, v10, v11")
A("v_lshlrev_b32 v12, 16, v8"); A("v_and_b32 v13, 0xffff0000, v8"); A("v_lshlrev_b32 v14, 16, v10"); A("v_and_b32 v15, 0xffff0000, v10")
A("v_mul_f32 v12, v12, v14"); A("v_mul_f32 v13, v13, v15"); A("v_cvt_pk_bf16_f32 v12, v12, v13")
A("v_add_u32 v24, s85, v27"); A("ds_write_b32 v24, v12")
A("v_lshlrev_b32 v24, 4, v28"); A("v_add_u32 v24, s85, v24")
A("s_waitcnt lgkmcnt(0)")
for kk in range(4): A(f"ds_read_b128 v[{8+4*kk}:{11+4*kk}], v24 offset:{64*kk}")
A("s_waitcnt lgkmcnt(0)")
mfma_tiles(4, 2, 8, 88)
select4("v24", 88, 2)
A("s_lshl_b32 s84, s3, 8"); A("v_add_u32 v25, s84, v27")
A("s_mov_b32 exec_hi, 0"); A(f"ds_write_b32 v25, v24 offset:{L_RED2}"); A("s_mov_b64 exec, -1")
A("s_waitcnt lgkmcnt(0)")
A("s_barrier")
A("s_cmp_lg_u32 s3, 0"); A("s_cbranch_scc1 L_end")
for w in range(12): A(f"ds_read_b32 v{8+w}, v27 offset:{L_RED2 + w*256}")
A("s_waitcnt lgkmcnt(0)")
for w in range(1, 12): A(f"v_add_f32 v8, v8, v{8+w}")
bf16r("v8", "v8")
A("v_mul_f32 v8, v102, v8"); bf16r("v8", "v8")
A("v_add_f32 v8, v101, v8"); A("v_cvt_pk_bf16_f32 v8, v8, v8")
A("v_lshlrev_b32 v9, 1, v1"); A("s_lshl_b32 s84, s10, 6")
A("s_mov_b32 exec_hi, 0")
A(f"buffer_store_short v8, v9, {R4(S_OUT)}, s84 offen")
A("s_mov_b64 exec, -1")
if STAMPS: stamp(12)
a.label("L_end")
A("s_endpgm")

body = a.finalize()
if STAMPS:
    pass
ftr = f"""
.section .rodata,"a"
.p2align 6
.amdhsa_kernel {KNAME}
  .amdhsa_next_free_vgpr 168
  .amdhsa_next_free_sgpr 102
  .amdhsa_accum_offset 168
  .amdhsa_group_segment_fixed_size 0
  .amdhsa_kernarg_size 112
  .amdhsa_user_sgpr_count 2
  .amdhsa_user_sgpr_kernarg_segment_ptr 1
  .amdhsa_system_sgpr_workgroup_id_x 1
.end_amdhsa_kernel
"""
open(OUT, "w").write("\n".join(hdr) + "\n" + body + ftr)
print("wrote", OUT, "auto nops", a.nauto)
```
